```python
import torch

def _softmax(x, axis=-1):
    return torch.softmax(x, dim=axis)
def _gelu(x):
    return torch.nn.functional.gelu(x, approximate="tanh")
def _silu(x):
    return torch.nn.functional.silu(x)
def _sigmoid(x):
    return torch.sigmoid(x)
def _layernorm(x, axis=-1, eps=1e-5):
    m = x.mean(dim=axis, keepdim=True)
    v = x.var(dim=axis, keepdim=True, unbiased=False)
    return (x - m) / torch.sqrt(v + eps)
def _scatter_add(tgt, idx, src, axis=0):
    return tgt.clone().index_add_(axis, idx, src)
def _segment_sum(src, seg, n):
    out = torch.zeros((n,) + src.shape[1:], dtype=src.dtype)
    return out.index_add_(0, seg, src)
def _pad(x, pw):
    flat = tuple(v for pair in reversed(pw) for v in pair)
    return torch.nn.functional.pad(x, flat)

kernel_name = 'standalone__cheap_equivariant_egnn__graph'

def setup_inputs():

    _w = (lambda a: (lambda t: t.to(torch.bfloat16) if t.is_floating_point() else t)(torch.as_tensor(a)))
    N, deg, D, De = 12500, 64, 64, max(16, 1)
    E = N * deg
    return {
        "h": _w((lambda *s: torch.randn(*s, dtype=torch.bfloat16) * 0.1)(N, D)),
        "pos": _w((lambda *s: torch.randn(*s, dtype=torch.bfloat16) * 0.8)(N, 3)),
        "e_attr": _w((lambda *s: torch.randn(*s, dtype=torch.bfloat16) * 0.8)(E, De)),
        "src": _w((lambda lo, hi, *s: torch.randint(lo, hi, s))(0, N, E).to(torch.int64)),
        "dst": _w((lambda lo, hi, *s: torch.randint(lo, hi, s))(0, N, E).to(torch.int64)),
        "w_e": _w(0.1 * (lambda *s: torch.randn(*s, dtype=torch.bfloat16) * 0.8)(2 * D + 1 + De, D)),
        "w_x": _w(0.1 * (lambda *s: torch.randn(*s, dtype=torch.bfloat16) * 0.1)(D, 1)),
        "w_h": _w(0.1 * (lambda *s: torch.randn(*s, dtype=torch.bfloat16) * 0.1)(2 * D, D)),
    }

def reference(h, pos, e_attr, src, dst, w_e, w_x, w_h):
    N, D = h.shape[0], h.shape[1]
    diff = pos[dst] - pos[src]
    dist2 = torch.sum(diff * diff, axis=-1, keepdims=True)
    e_in = torch.concatenate([h[dst], h[src], dist2, e_attr], axis=-1)
    m_ij = _silu(e_in @ w_e)
    coord_scale = m_ij @ w_x
    pos_new = pos + _segment_sum(diff * coord_scale, dst, N)
    m_i = _segment_sum(m_ij, dst, N)
    h_new = h + _silu(torch.concatenate([h, m_i], axis=-1) @ w_h)
    return h_new, pos_new
```

```python
import re, sys

TRANS = ("v_exp_", "v_log_", "v_rcp_", "v_rsq_", "v_sqrt_", "v_sin_", "v_cos_")

def regs_of(tok):
    tok = tok.strip().lstrip("-").strip("|")
    m = re.fullmatch(r"([vsa])(\d+)", tok)
    if m: return {(m.group(1), int(m.group(2)))}
    m = re.fullmatch(r"([vsa])\[(\d+):(\d+)\]", tok)
    if m: return {(m.group(1), i) for i in range(int(m.group(2)), int(m.group(3)) + 1)}
    if tok == "vcc": return {("s", 106), ("s", 107)}
    if tok == "vcc_lo": return {("s", 106)}
    if tok == "vcc_hi": return {("s", 107)}
    if tok == "exec": return {("s", 126), ("s", 127)}
    if tok == "exec_lo": return {("s", 126)}
    if tok == "exec_hi": return {("s", 127)}
    if tok == "m0": return {("s", 124)}
    return set()

EXEC = {("s", 126), ("s", 127)}
VCC = {("s", 106), ("s", 107)}
M0 = {("s", 124)}

def passes(op):
    if "32x32x4_2b" in op or "32x32x1_2b" in op: return 16
    if "4x4x" in op: return 2
    if "16x16x4_4b" in op: return 8
    if "32x32" in op: return 8
    if "16x16" in op: return 4
    raise ValueError(op)

class I:
    def __init__(s, text, ln):
        s.text, s.ln = text, ln
        parts = text.split(None, 1)
        s.op = parts[0]
        rest = parts[1] if len(parts) > 1 else ""
        ops, cur, depth = [], "", 0
        for ch in rest:
            if ch == "[": depth += 1
            if ch == "]": depth -= 1
            if ch == "," and depth == 0: ops.append(cur.strip()); cur = ""
            else: cur += ch
        if cur.strip(): ops.append(cur.strip())
        s.mods = ""
        if ops:
            last = ops[-1].split(None, 1)
            ops[-1] = last[0]
            s.mods = last[1] if len(last) > 1 else ""
        s.ops = ops
        op = s.op
        s.mfma = op.startswith("v_mfma") or op.startswith("v_smfmac")
        s.valu = op.startswith("v_") and not s.mfma
        s.salu = op.startswith("s_")
        s.ds = op.startswith("ds_")
        s.vmem = op.startswith(("buffer_", "global_", "flat_"))
        s.trans = op.startswith(TRANS)
        s.dot = op.startswith("v_dot")
        s.dpp = "_dpp" in op
        s.ldsdma = s.vmem and (" lds" in " " + s.mods or "_lds_" in op)
        R = [regs_of(o) for o in ops]
        s.w, s.r = set(), set()
        s.A = s.B = s.C = set()
        s.sdata = set()
        if s.mfma:
            s.w = R[0]; s.A, s.B = R[1], R[2]
            if op.startswith("v_smfmac"): s.C = R[0]; s.B = R[2] | R[3]
            else: s.C = R[3]
            s.r = s.A | s.B | s.C
            s.p = passes(op)
        elif s.valu:
            if op.startswith("v_cmpx"):
                s.w = R[0] | EXEC; s.r = set().union(*R[1:])
            elif op.startswith("v_permlane") and "swap" in op:
                s.w = R[0] | R[1]; s.r = R[0] | R[1]
            elif op.startswith(("v_add_co", "v_sub_co", "v_addc_co", "v_subb_co", "v_mad_u64")):
                s.w = R[0] | R[1]; s.r = set().union(*R[2:])
            elif op == "v_nop": pass
            else:
                s.w = R[0]; s.r = set().union(*R[1:]) if len(R) > 1 else set()
                if op.startswith(("v_fmac", "v_dot2c", "v_writelane")) or s.dpp: s.r |= R[0]
        elif s.ds:
            if op.startswith(("ds_read", "ds_bpermute", "ds_permute", "ds_swizzle")) or "_rtn" in op:
                s.w = R[0]; s.r = set().union(*R[1:])
            else: s.r = set().union(*R)
        elif s.vmem:
            if "load" in op and not s.ldsdma: s.w = R[0]; s.r = set().union(*R[1:])
            elif "atomic" in op and "sc0" in s.mods: s.w = R[0]; s.r = set().union(*R)
            else:
                s.r = set().union(*R) if R else set()
                if "store" in op and ("x3" in op or "x4" in op):
                    s.sdata = R[0] if op.startswith("buffer") else R[1]
            if s.ldsdma: s.r = s.r | M0
        elif s.salu:
            if op.startswith(("s_cmp", "s_cbranch", "s_branch", "s_waitcnt", "s_nop", "s_barrier", "s_endpgm", "s_setprio", "s_sleep", "s_bitcmp")):
                s.r = set().union(*R) if R else set()
            else:
                s.w = R[0] if R else set(); s.r = set().union(*R[1:]) if len(R) > 1 else set()
                if "saveexec" in op: s.w = s.w | EXEC
        s.states = 1
        if op == "s_nop": s.states = int(ops[0], 0) + 1

def need(p, c):
    n = 0
    pv = {r for r in p.w if r[0] in "va"}
    ps = {r for r in p.w if r[0] == "s"}
    if p.valu:
        if c.mfma and pv & c.r: n = max(n, 3 if p.dot else 2)
        if c.mfma and ps & EXEC: n = max(n, 4)
        if p.trans and c.valu and not c.trans and pv & c.r: n = max(n, 1)
        if p.trans and (c.ds or c.vmem) and pv & c.r: n = max(n, 1)
        if c.dpp and pv & c.r: n = max(n, 2)
        if c.dpp and ps & EXEC: n = max(n, 5)
        if c.op.startswith(("v_readlane", "v_readfirstlane")) and pv & c.r: n = max(n, 1)
        if c.op.startswith("v_permlane") and pv & c.r: n = max(n, 2)
        if c.op.startswith(("v_readlane", "v_readfirstlane", "v_writelane", "v_permlane")) and ps & EXEC: n = max(n, 4)
        if c.valu and ps & c.r:
            n = max(n, 4 if c.op.startswith(("v_readlane", "v_writelane")) else 2)
        if c.vmem and (ps - EXEC) & c.r: n = max(n, 5)
        if "dst_sel" in p.mods and "dst_sel:DWORD" not in p.mods and c.valu and pv & (c.r | c.w): n = max(n, 1)
        if p.dot and pv & (c.r | c.w) and (c.valu or c.ds or c.vmem):
            if c.op == p.op and not (pv & (regs_of(c.ops[1]) | regs_of(c.ops[2]))): pass
            else: n = max(n, 3)
    if p.mfma:
        T = {2: 5, 4: 8, 8: 12, 16: 20}[p.p]
        if c.mfma:
            if p.w & (c.A | c.B): n = max(n, T)
            if p.w & c.C:
                if p.w == c.C and p.p == c.p: n = max(n, 2 if p.p == 2 else 0)
                else: n = max(n, {2: 4, 4: 6, 8: 10, 16: 18}[p.p])
            elif p.w & c.w and p.p != c.p: n = max(n, T)
        elif (c.valu or c.ds or c.vmem) and p.w & (c.r | c.w): n = max(n, T)
        if c.valu and p.C & c.w: n = max(n, {2: 1, 4: 3, 8: 7, 16: 15}[p.p])
    if p.salu and ps & M0 and (c.ldsdma or "addtid" in c.op): n = max(n, 1)
    if p.sdata and p.sdata & c.w: n = max(n, 2 if c.valu else 1)
    return n

def check(asm):
    ins, labels = [], {}
    for ln, line in enumerate(asm.split("\n"), 1):
        t = line.split(";")[0].strip()
        if not t or t.startswith("."): continue
        m = re.fullmatch(r"([\w.]+):", t)
        if m: labels[m.group(1)] = len(ins); continue
        ins.append(I(t, ln))
    preds = [[] for _ in ins]
    for i, x in enumerate(ins):
        if x.op.startswith(("s_branch", "s_cbranch")):
            tgt = labels[x.ops[0]]
            if tgt < len(ins): preds[tgt].append(i)
        if x.op not in ("s_branch", "s_endpgm") and i + 1 < len(ins): preds[i + 1].append(i)
    bad = []
    for i, c in enumerate(ins):
        stack = [(j, 0) for j in preds[i]]
        seen = {}
        while stack:
            j, d = stack.pop()
            if d >= 20 or seen.get(j, 99) <= d: continue
            seen[j] = d
            p = ins[j]
            n = need(p, c)
            if n > d: bad.append((p, c, n, d))
            for q in preds[j]: stack.append((q, d + p.states))
    return bad

if __name__ == "__main__":
    b = check(open(sys.argv[1]).read())
    for p, c, n, d in b: print(f"HAZARD need {n} have {d}: L{p.ln} '{p.text}' -> L{c.ln} '{c.text}'")
    print(len(b), "hazards")
```

```python
import sys, struct, argparse
import hazard

N, E, NB, CH = 12500, 800000, 49, 3136
CHB = CH * 4
REC_BYTES = 256 * CHB
DESC_OFF = 0x400000
STAMP_OFF = 0x800000
NAME = "standalone__cheap_equivariant_egnn__graph"


def f32(x):
    return "0x%08x" % struct.unpack("<I", struct.pack("<f", x))[0]


LOG2E = 1.4426950408889634
LN2 = 0.6931471805599453


class Asm:
    def __init__(s):
        s.L = []

    def __call__(s, t):
        for line in t.strip("\n").split("\n"):
            line = line.strip()
            if line:
                s.L.append(line if line.endswith(":") or line.startswith(".") else "    " + line)

    def text(s):
        return "\n".join(s.L) + "\n"


def v(n, c=1):
    return f"v{n}" if c == 1 else f"v[{n}:{n + c - 1}]"


def s(n, c=1):
    return f"s{n}" if c == 1 else f"s[{n}:{n + c - 1}]"


class Alloc:
    def __init__(s, start):
        s.n = start

    def __call__(s, c=1, align=None):
        a = align or (1 if c == 1 else 2)
        s.n = (s.n + a - 1) // a * a
        r = s.n
        s.n += c
        return r


def srd(a, d, base, nbytes, off=0):
    if off:
        a(f"s_add_u32 {s(d)}, {s(base)}, {off:#x}")
        a(f"s_addc_u32 {s(d + 1)}, {s(base + 1)}, 0")
    else:
        a(f"s_mov_b32 {s(d)}, {s(base)}")
        a(f"s_mov_b32 {s(d + 1)}, {s(base + 1)}")
    a(f"s_mov_b32 {s(d + 2)}, {nbytes:#x}")
    a(f"s_mov_b32 {s(d + 3)}, 0x20000")


def descriptor(name, nv, ns):
    return f"""
.section .rodata,"a"
.p2align 6
.amdhsa_kernel {name}
  .amdhsa_next_free_vgpr {nv}
  .amdhsa_next_free_sgpr {ns}
  .amdhsa_accum_offset {(nv + 3) // 4 * 4}
  .amdhsa_group_segment_fixed_size 0
  .amdhsa_kernarg_size 88
  .amdhsa_user_sgpr_count 2
  .amdhsa_user_sgpr_kernarg_segment_ptr 1
  .amdhsa_system_sgpr_workgroup_id_x 1
  .amdhsa_float_denorm_mode_32 3
.end_amdhsa_kernel
.text
"""


class Stamps:
    def __init__(s_, a, on, vreg, tmp):
        s_.a, s_.on, s_.vreg, s_.tmp, s_.n = a, on, vreg, tmp, 0

    def __call__(s_):
        if not s_.on:
            return
        a = s_.a
        a(f"s_memrealtime {s(s_.tmp, 2)}")
        a("s_waitcnt lgkmcnt(0)")
        a(f"v_writelane_b32 {v(s_.vreg)}, {s(s_.tmp)}, {s_.n}")
        s_.n += 1

    def dump(s_, srd_reg, wsbase, kidx, swave, va):
        if not s_.on:
            return
        a = s_.a
        srd(a, srd_reg, wsbase, 0x40000, STAMP_OFF + kidx * 0x40000)
        a(f"s_lshl_b32 {s(s_.tmp)}, s2, 4")
        a(f"s_add_u32 {s(s_.tmp)}, {s(s_.tmp)}, {s(swave)}")
        a(f"s_lshl_b32 {s(s_.tmp)}, {s(s_.tmp)}, 6")
        a("s_mov_b64 exec, 0xffff")
        a(f"v_and_b32 {v(va)}, 15, v0")
        a(f"v_lshl_add_u32 {v(va)}, {v(va)}, 2, {s(s_.tmp)}")
        a(f"buffer_store_dword {v(s_.vreg)}, {v(va)}, {s(srd_reg, 4)}, 0 offen")


K1_THREADS = 448
K1_LDS = 2048 + CHB


def gen_k1(a, o):
    name = "egnn_bin_kernel"
    a(f".globl {name}\n.p2align 8\n.type {name},@function\n{name}:")
    sSRC, sDST, sREC, sDESC = 16, 20, 24, 28
    sChunk, sCp, sOff, sNe, sW, sM, sN65 = 32, 33, 34, 35, 36, 37, 38
    sJ = [None, 39, 40, 41]
    sMA, sMB = 42, 44
    st = Stamps(a, o.stamps, 63, 58)
    st()
    a(f"""
    s_cmp_ge_u32 s2, 256
    s_cbranch_scc1 L1_end
    s_load_dwordx4 s[4:7], s[0:1], 24
    s_load_dwordx2 s[8:9], s[0:1], 80
    s_and_b32 s10, s2, 7
    s_lshr_b32 s12, s2, 5
    s_bfe_u32 s13, s2, 0x20003
    s_lshl_b32 {s(sChunk)}, s12, 5
    s_lshl_b32 s14, s10, 2
    s_add_u32 {s(sChunk)}, {s(sChunk)}, s14
    s_add_u32 {s(sChunk)}, {s(sChunk)}, s13
    s_lshl_b32 {s(sCp)}, s10, 5
    s_lshl_b32 s14, s13, 3
    s_add_u32 {s(sCp)}, {s(sCp)}, s14
    s_add_u32 {s(sCp)}, {s(sCp)}, s12
    s_lshl_b32 {s(sCp)}, {s(sCp)}, 2
    s_mul_i32 {s(sOff)}, {s(sChunk)}, {CHB}
    s_mul_i32 s14, {s(sChunk)}, {CH}
    s_sub_u32 {s(sNe)}, {E}, s14
    """)
    V = Alloc(1)
    vA, vB, vEa, vEb, vC7, vT, vT2, vFour, vL16 = [V() for _ in range(9)]
    vD = V(8, 4)
    vS = V(8, 4)
    vAd = V(8, 4)
    vRk = V(8, 4)
    vC = V(4, 4)
    vBs = V(4, 4)
    vX = V()
    vO = vAd
    a(f"""
    v_lshlrev_b32 {v(vA)}, 4, v0
    v_mul_u32_u24 {v(vB)}, 12, v0
    v_add_u32 {v(vB)}, {1792 * 4}, {v(vB)}
    s_waitcnt lgkmcnt(0)
    """)
    srd(a, sDST, 6, E * 4)
    srd(a, sSRC, 4, E * 4)
    pol = o.k1_ld
    a(f"""
    buffer_load_dwordx4 {v(vD, 4)}, {v(vA)}, {s(sDST, 4)}, {s(sOff)} offen {pol}
    buffer_load_dwordx3 {v(vD + 4, 3)}, {v(vB)}, {s(sDST, 4)}, {s(sOff)} offen {pol}
    buffer_load_dwordx4 {v(vS, 4)}, {v(vA)}, {s(sSRC, 4)}, {s(sOff)} offen {pol}
    buffer_load_dwordx3 {v(vS + 4, 3)}, {v(vB)}, {s(sSRC, 4)}, {s(sOff)} offen {pol}
    """)
    srd(a, sREC, 8, REC_BYTES)
    srd(a, sDESC, 8, 256 * 1024, DESC_OFF)
    a(f"""
    v_lshlrev_b32 {v(vT)}, 2, v0
    v_mov_b32 {v(vT2)}, 0
    ds_write_b32 {v(vT)}, {v(vT2)}
    v_lshrrev_b32 {v(vT2)}, 6, v0
    v_cmp_gt_u32 {s(sMA, 2)}, {s(sNe)}, {v(vT)}
    v_readfirstlane_b32 {s(sW)}, {v(vT2)}
    v_lshrrev_b32 {v(vT)}, 2, {v(vB)}
    v_cmp_gt_u32 {s(sMB, 2)}, {s(sNe)}, {v(vT)}
    v_lshlrev_b32 {v(vEa)}, 22, v0
    v_lshlrev_b32 {v(vEb)}, 20, {v(vT)}
    v_and_b32 {v(vC7)}, 7, v0
    v_lshlrev_b32 {v(vC7)}, 7, {v(vC7)}
    v_mov_b32 {v(vFour)}, 4
    v_and_b32 {v(vL16)}, 63, v0
    v_lshlrev_b32 {v(vL16)}, 4, {v(vL16)}
    v_mov_b32 {v(vAd)}, 0
    v_mov_b32 {v(vAd + 1)}, 0
    v_mov_b32 {v(vAd + 2)}, 0
    v_mov_b32 {v(vAd + 3)}, 0
    v_mov_b32 {v(vAd + 4)}, 0
    v_mov_b32 {v(vAd + 5)}, 0
    v_mov_b32 {v(vAd + 6)}, 0
    s_mov_b32 {s(sM)}, 684785
    s_mov_b32 {s(sN65)}, -65
    s_mov_b32 {s(sJ[1])}, {1 << 20:#x}
    s_mov_b32 {s(sJ[2])}, {2 << 20:#x}
    s_mov_b32 {s(sJ[3])}, {3 << 20:#x}
    s_waitcnt lgkmcnt(0)
    s_barrier
    """)
    for grp, js, wait in ((sMA, range(4), 3), (sMB, range(4, 7), 2)):
        a(f"s_waitcnt vmcnt({wait})")
        if grp == sMA:
            st()
        a(f"s_mov_b64 exec, {s(grp, 2)}")
        for j in js:
            a(f"""
            v_lshl_add_u32 {v(vT)}, {v(vD + j)}, 10, {v(vC7)}
            v_mul_hi_u32_u24 {v(vT)}, {s(sM)}, {v(vT)}
            v_lshrrev_b32 {v(vT2)}, 3, {v(vT)}
            v_lshlrev_b32 {v(vAd + j)}, 2, {v(vT2)}
            ds_add_rtn_u32 {v(vRk + j)}, {v(vAd + j)}, {v(vFour)}
            v_lshl_add_u32 {v(vT)}, {v(vT)}, 1, {v(vD + j)}
            v_mad_i32_i24 {v(vD + j)}, {v(vT2)}, {s(sN65)}, {v(vT)}
            """)
    a("s_mov_b64 exec, -1\ns_waitcnt lgkmcnt(0)\ns_barrier")
    st()
    a(f"ds_read_b128 {v(vC, 4)}, {v(vL16)}")
    a("s_waitcnt vmcnt(0)")
    for j in range(7):
        eb = vEa if j < 4 else vEb
        jj = j if j < 4 else j - 4
        a(f"v_lshl_add_u32 {v(vS + j)}, {v(vS + j)}, 6, {v(eb)}")
        if jj:
            a(f"v_add3_u32 {v(vS + j)}, {v(vS + j)}, {v(vD + j)}, {s(sJ[jj])}")
        else:
            a(f"v_add_u32 {v(vS + j)}, {v(vS + j)}, {v(vD + j)}")
    a(f"""
    s_waitcnt lgkmcnt(0)
    v_add_u32 {v(vBs + 2)}, {v(vC)}, {v(vC + 1)}
    v_add_u32 {v(vBs + 3)}, {v(vBs + 2)}, {v(vC + 2)}
    v_add_u32 {v(vT)}, {v(vBs + 3)}, {v(vC + 3)}
    v_mov_b32 {v(vX)}, {v(vT)}
    s_nop 1
    """)
    for sh in (1, 2, 4, 8):
        a(f"v_add_u32_dpp {v(vX)}, {v(vX)}, {v(vX)} row_shr:{sh} row_mask:0xf bank_mask:0xf bound_ctrl:1\ns_nop 1")
    a(f"v_add_u32_dpp {v(vX)}, {v(vX)}, {v(vX)} row_bcast:15 row_mask:0xa bank_mask:0xf\ns_nop 1")
    a(f"v_add_u32_dpp {v(vX)}, {v(vX)}, {v(vX)} row_bcast:31 row_mask:0xc bank_mask:0xf")
    a(f"""
    v_sub_u32 {v(vBs)}, {v(vX)}, {v(vT)}
    v_add_u32 {v(vBs + 1)}, {v(vBs)}, {v(vC)}
    v_add_u32 {v(vBs + 2)}, {v(vBs)}, {v(vBs + 2)}
    v_add_u32 {v(vBs + 3)}, {v(vBs)}, {v(vBs + 3)}
    ds_write_b128 {v(vL16)}, {v(vBs, 4)} offset:1024
    """)
    for j in range(7):
        a(f"ds_read_b32 {v(vD + j)}, {v(vAd + j)} offset:1024")
    a(f"v_lshlrev_b32 {v(vT)}, 8, {v(vL16)}")
    for q in range(4):
        a(f"""
        s_cmp_lg_u32 {s(sW)}, {q}
        s_cbranch_scc1 L1_d{q}
        v_lshl_or_b32 {v(vT2)}, {v(vC + q)}, 16, {v(vBs + q)}
        buffer_store_dword {v(vT2)}, {v(vT)}, {s(sDESC, 4)}, {s(sCp)} offen offset:{q * 1024} {o.k1_st}
        L1_d{q}:
        """)
    for grp, js in ((sMA, range(4)), (sMB, range(4, 7))):
        a(f"s_mov_b64 exec, {s(grp, 2)}")
        for j in js:
            a(f"s_waitcnt lgkmcnt(6)")
            a(f"v_add_u32 {v(vD + j)}, {v(vD + j)}, {v(vRk + j)}")
            a(f"ds_write_b32 {v(vD + j)}, {v(vS + j)} offset:2048")
    a(f"""
    s_mov_b64 exec, -1
    v_cmp_gt_u32 vcc, {CH // 4 - K1_THREADS}, v0
    v_add_u32 {v(vB)}, {K1_THREADS * 16}, {v(vA)}
    s_waitcnt lgkmcnt(0)
    s_barrier
    """)
    st()
    a(f"""
    ds_read_b128 {v(vO, 4)}, {v(vA)} offset:2048
    ds_read_b128 {v(vO + 4, 4)}, {v(vB)} offset:2048
    s_waitcnt lgkmcnt(1)
    buffer_store_dwordx4 {v(vO, 4)}, {v(vA)}, {s(sREC, 4)}, {s(sOff)} offen {o.k1_st}
    s_and_b64 exec, exec, vcc
    s_cbranch_execz L1_fin
    s_waitcnt lgkmcnt(0)
    buffer_store_dwordx4 {v(vO + 4, 4)}, {v(vB)}, {s(sREC, 4)}, {s(sOff)} offen {o.k1_st}
    L1_fin:
    """)
    if o.stamps:
        a("s_waitcnt vmcnt(0)")
        st()
        st.dump(48, 8, 0, sW, vT)
    a("L1_end:\ns_endpgm")
    assert V.n <= 63
    a(descriptor(name, 64, 80))
    return name


POS = 0
STG = 75776
SBUF = STG + 32768
TAB = SBUF + 16384
CNT = TAB + 2048
LST0 = CNT + 128
LST1 = LST0 + 16384
K2_LDS = LST1 + 16384 + 512
NULL0 = (N << 7) | (7 << 1)
NULL1 = 0x80000000


def gen_k2(a, o):
    name = "egnn_main_kernel"
    a(f".globl {name}\n.p2align 8\n.type {name},@function\n{name}:")
    S = Alloc(4)
    sP = S(12, 4)
    sH, sPOS, sEA, sWE, sWX, sWH, sOH, sOP, sREC, sDESC = [S(4, 4) for _ in range(10)]
    sWS = sP + 6
    sMask = S(32, 4)
    sW, sBk, sN0, sT0, sT1, sNT, sIt, sStg, sHM = [S() for _ in range(9)]
    sMode, sCi, sSo = sMask + 0, sMask + 1, sMask + 2
    sNL, sKap, sHi = sP + 8, sP + 9, sP + 10
    st = Stamps(a, o.stamps, 255, 100)
    assert S.n <= 100, S.n

    V = Alloc(1)
    vL = V()
    W2 = V(32, 4); W4 = V(8, 4); OH = V(8, 4)
    AC = V(32, 4); Y = V(32, 4); T = V(32, 4)
    Hf = V(16, 4); Ef = V(4, 4); Oa = V(4, 4); Sa = V(8, 4)
    R4 = V(4, 4); R1 = V(2, 2); R2 = R1 + 1
    Cj = V(4); Hrd = V(4)
    vSrd, vSbe, vSold, vTb, vLa4, vLa1, vHh16 = [V() for _ in range(7)]
    Ps = V(3); Pd = V(4, 4); Val = V(2, 2); Zero = V(2, 2)
    t0, t1, t2, t3 = [V() for _ in range(4)]
    HB = V(16, 4); HR = V(4, 4)
    vWx = V(2, 2)
    One = V(2, 2)
    vIdx = V()
    assert V.n <= 255, V.n
    Ds = AC
    Rc = AC + 8
    Rk = Y
    Ad = Y + 16
    vLo, vLoG, vG, vMx, vFour, vLoB = [AC + 24 + i for i in range(6)]
    Wp = HB
    Wd = HR

    a(f"""
    s_cmp_ge_u32 s2, 256
    s_cbranch_scc1 L2_end
    s_load_dwordx2 {s(sWS, 2)}, s[0:1], 80
    s_load_dwordx4 {s(sP, 4)}, s[0:1], 0
    s_load_dwordx2 {s(sP + 4, 2)}, s[0:1], 16
    s_load_dwordx8 {s(sMask, 8)}, s[0:1], 40
    v_lshrrev_b32 {v(t0)}, 6, v0
    v_and_b32 {v(vL)}, 63, v0
    v_readfirstlane_b32 {s(sW)}, {v(t0)}
    s_and_b32 {s(sT0)}, s2, 7
    s_lshl_b32 {s(sT0)}, {s(sT0)}, 5
    s_lshr_b32 {s(sBk)}, s2, 3
    s_add_u32 {s(sBk)}, {s(sBk)}, {s(sT0)}
    s_mul_i32 {s(sN0)}, {s(sBk)}, {NB}
    s_lshl_b32 {s(sT0)}, {s(sBk)}, 10
    v_lshrrev_b32 {v(t1)}, 4, v0
    v_lshlrev_b32 {v(t1)}, 5, {v(t1)}
    v_lshlrev_b32 {v(t2)}, 4, v0
    s_waitcnt lgkmcnt(0)
    """)
    assert sMask % 4 == 0
    srd(a, sDESC, sWS, 256 * 1024, DESC_OFF)
    a(f"""
    buffer_load_dwordx4 {v(Ds, 4)}, {v(t1)}, {s(sDESC, 4)}, {s(sT0)} offen
    buffer_load_dwordx4 {v(Ds + 4, 4)}, {v(t1)}, {s(sDESC, 4)}, {s(sT0)} offen offset:16
    """)
    srd(a, sWE, sMask, 145 * 128)
    srd(a, sH, sP, N * 128)
    srd(a, sPOS, sP + 2, N * 6)
    srd(a, sEA, sP + 4, E * 32)
    srd(a, sWX, sMask + 2, 128)
    srd(a, sWH, sMask + 4, 128 * 128)
    srd(a, sOH, sMask + 6, N * 128)
    srd(a, sOP, sMask + 6, N * 6, N * 128)
    srd(a, sREC, sWS, REC_BYTES)
    st()
    a(f"""
    s_mov_b32 {s(sT0)}, 8192
    s_mov_b32 {s(sT1)}, 16384
    buffer_load_dwordx4 {v(Wp, 4)}, {v(t2)}, {s(sWE, 4)}, 0 offen
    buffer_load_dwordx4 {v(Wp + 4, 4)}, {v(t2)}, {s(sWE, 4)}, {s(sT0)} offen
    buffer_load_dwordx4 {v(Wp + 8, 4)}, {v(t2)}, {s(sWE, 4)}, {s(sT1)} offen
    v_and_b32 {v(t0)}, 31, {v(vL)}
    v_lshlrev_b32 {v(t1)}, 1, {v(t0)}
    buffer_load_short_d16_hi {v(Wd)}, {v(t1)}, {s(sWE, 4)}, {s(sT1)} offen
    buffer_load_short_d16_hi {v(Wd + 1)}, {v(t1)}, {s(sWE, 4)}, {s(sT1)} offen offset:64
    buffer_load_short_d16_hi {v(vWx)}, {v(t1)}, {s(sWX, 4)}, 0 offen
    buffer_load_short_d16_hi {v(vWx + 1)}, {v(t1)}, {s(sWX, 4)}, 0 offen offset:64
    """)
    a(f"""
    s_mul_i32 {s(sT0)}, {s(sW)}, 6
    s_add_u32 {s(sT0)}, {s(sT0)}, {s(sN0)}
    v_lshrrev_b32 {v(vHh16)}, 5, {v(vL)}
    v_lshlrev_b32 {v(vHh16)}, 4, {v(vHh16)}
    v_lshrrev_b32 {v(t1)}, 3, {v(t0)}
    v_and_b32 {v(t3)}, 3, {v(t0)}
    v_lshl_add_u32 {v(t1)}, {v(t1)}, 2, {v(t3)}
    v_add_u32 {v(t1)}, {s(sT0)}, {v(t1)}
    v_lshl_add_u32 {v(t1)}, {v(t1)}, 7, {v(vHh16)}
    v_bfrev_b32 {v(t3)}, 1
    v_cmp_gt_u32 vcc, 16, {v(t0)}
    s_mul_i32 {s(sT0)}, {s(sT0)}, 6
    s_nop 0
    v_cndmask_b32 {v(t1)}, {v(t3)}, {v(t1)}, vcc
    """)
    for ks in range(4):
        a(f"buffer_load_dwordx4 {v(Hf + 4 * ks, 4)}, {v(t1)}, {s(sH, 4)}, 0 offen offset:{32 * ks}")
    a(f"""
    v_lshrrev_b32 {v(t1)}, 2, {v(t0)}
    v_and_b32 {v(Pd)}, 3, {v(t0)}
    v_mul_u32_u24 {v(Pd + 1)}, 6, {v(t1)}
    v_lshl_add_u32 {v(Pd + 1)}, {v(Pd)}, 1, {v(Pd + 1)}
    v_cmp_gt_u32 vcc, 3, {v(Pd)}
    v_cmp_gt_u32 {s(sMask + 8, 2)}, 7, {v(t1)}
    s_and_b64 vcc, vcc, {s(sMask + 8, 2)}
    s_nop 1
    v_cndmask_b32 {v(Pd + 1)}, {v(t3)}, {v(Pd + 1)}, vcc
    buffer_load_short_d16_hi {v(Pd + 2)}, {v(Pd + 1)}, {s(sPOS, 4)}, {s(sT0)} offen
    """)
    n_early = 3 + 4 + 4 + 1

    def pos_dma(lo, hi):
        for i in range(lo, hi):
            if i == 9:
                a(f"s_cmp_ge_u32 {s(sW)}, 2\ns_cbranch_scc1 L2_nopos")
            a(f"""
            s_lshl_b32 {s(sT0)}, {s(sW)}, 10
            s_add_u32 {s(sT0)}, {s(sT0)}, {i * 8192}
            s_add_u32 m0, {s(sT0)}, {POS}
            s_nop 0
            buffer_load_dwordx4 {v(vIdx)}, {s(sPOS, 4)}, {s(sT0)} offen lds
            """)
            if i == 9:
                a("L2_nopos:")

    a(f"v_lshlrev_b32 {v(vIdx)}, 4, {v(vL)}")
    pos_dma(0, o.pos_early)
    a(f"""
    v_lshrrev_b32 {v(t3)}, 1, {v(t1)}
    v_cmp_eq_u32 vcc, {v(t3)}, {v(Pd)}
    v_and_b32 {v(t3)}, 1, {v(t1)}
    v_lshlrev_b32 {v(t3)}, 4, {v(t3)}
    v_mov_b32 {v(Val)}, 0x3f80
    v_lshlrev_b32 {v(t3)}, {v(t3)}, {v(Val)}
    v_cndmask_b32 {v(t3)}, 0, {v(t3)}, vcc
    v_lshlrev_b32 {v(Val)}, 16, {v(t3)}
    v_cmp_eq_u32 vcc, 3, {v(Pd)}
    s_lshl_b32 {s(sT0)}, {s(sW)}, 8
    s_add_u32 {s(sT0)}, {s(sT0)}, {TAB}
    v_cndmask_b32 {v(t3)}, {v(t3)}, {v(Val)}, vcc
    v_mov_b32 {v(vTb)}, {s(sT0)}
    v_lshl_add_u32 {v(Pd + 1)}, {v(t0)}, 2, {v(vTb)}
    ds_write_b32 {v(Pd + 1)}, {v(t3)}
    s_lshl_b32 {s(sT0)}, {s(sW)}, 11
    s_add_u32 {s(sT0)}, {s(sT0)}, {SBUF}
    v_lshl_add_u32 {v(vSbe)}, {v(t0)}, 6, {s(sT0)}
    v_mov_b32 {v(vSold)}, {v(vSbe)}
    v_add_u32 {v(t3)}, {s(sT0)}, {v(vIdx)}
    v_mov_b32 {v(Sa)}, 0
    v_mov_b32 {v(Sa + 1)}, 0
    v_mov_b32 {v(Sa + 2)}, 0
    v_mov_b32 {v(Sa + 3)}, 0
    v_mov_b32 {v(Zero)}, 0
    v_mov_b32 {v(Zero + 1)}, 0
    ds_write_b128 {v(t3)}, {v(Sa, 4)}
    ds_write_b128 {v(t3)}, {v(Sa, 4)} offset:1024
    """)
    hs, qs = (4, 8) if not o.smfmac else (8, 4)
    a(f"""
    v_lshrrev_b32 {v(t1)}, 5, {v(vL)}
    v_bfe_u32 {v(t3)}, {v(vL)}, 2, 2
    v_mad_u32_u24 {v(vSrd)}, {v(t1)}, {hs}, {v(t3)}
    v_lshl_add_u32 {v(vSrd)}, {v(vSrd)}, 6, {s(sT0)}
    v_bfe_u32 {v(Val)}, {v(vL)}, 4, 1
    v_lshlrev_b32 {v(Val)}, 5, {v(Val)}
    v_and_b32 {v(Val + 1)}, 3, {v(vL)}
    v_lshl_add_u32 {v(Val)}, {v(Val + 1)}, 3, {v(Val)}
    v_add_u32 {v(vSrd)}, {v(vSrd)}, {v(Val)}
    v_lshl_add_u32 {v(t1)}, {v(t1)}, 3, {v(t3)}
    v_lshl_add_u32 {v(R4)}, {v(t1)}, 7, {v(Val)}
    v_add_u32 {v(R4)}, {STG}, {v(R4)}
    """)

    def reset_counters():
        a(f"""
        v_and_b32 {v(t1)}, 7, {v(vL)}
        v_lshlrev_b32 {v(t3)}, 11, {v(t1)}
        v_add_u32 {v(t3)}, {LST0}, {v(t3)}
        v_lshlrev_b32 {v(t1)}, 3, {v(t1)}
        v_add_u32 {v(t1)}, {CNT}, {v(t1)}
        ds_write_b32 {v(t1)}, {v(t3)}
        """)

    reset_counters()
    a(f"""
    s_lshl_b32 {s(sStg)}, {s(sW)}, 12
    s_add_u32 {s(sStg)}, {s(sStg)}, {STG}
    s_mov_b32 {s(sHM)}, 0x1fff80
    v_and_b32 {v(t1)}, 7, {v(vL)}
    v_lshrrev_b32 {v(t3)}, 3, {v(vL)}
    v_and_b32 {v(t3)}, 4, {v(t3)}
    v_xor_b32 {v(t1)}, {v(t1)}, {v(t3)}
    v_lshlrev_b32 {v(Cj)}, 4, {v(t1)}
    v_xor_b32 {v(Cj + 1)}, 16, {v(Cj)}
    v_xor_b32 {v(Cj + 2)}, 32, {v(Cj)}
    v_xor_b32 {v(Cj + 3)}, 48, {v(Cj)}
    v_and_b32 {v(t1)}, 3, {v(t0)}
    v_lshrrev_b32 {v(t3)}, 2, {v(t0)}
    v_lshl_add_u32 {v(Val)}, {v(t1)}, 3, {v(t3)}
    v_lshl_add_u32 {v(Val)}, {v(Val)}, 7, {s(sStg)}
    v_and_or_b32 {v(t1)}, {v(t3)}, 4, {v(t1)}
    v_lshlrev_b32 {v(t1)}, 4, {v(t1)}
    v_xor_b32 {v(t1)}, {v(t1)}, {v(vHh16)}
    v_add_u32 {v(Hrd)}, {v(Val)}, {v(t1)}
    v_xor_b32 {v(Hrd + 1)}, 32, {v(Hrd)}
    v_xor_b32 {v(Hrd + 2)}, 64, {v(Hrd)}
    v_xor_b32 {v(Hrd + 3)}, 0x60, {v(Hrd)}
    v_mov_b32 {v(One)}, 0x3f80
    v_mov_b32 {v(One + 1)}, 0
    """)
    assert STG % 128 == 0
    a(f"""
    v_and_b32 {v(vLo)}, 15, {v(vL)}
    v_lshlrev_b32 {v(vLo)}, 2, {v(vLo)}
    v_lshrrev_b32 {v(t1)}, 4, {v(vL)}
    v_mul_u32_u24 {v(vG)}, {CHB}, {v(t1)}
    v_add_u32 {v(vLoG)}, {v(vG)}, {v(vLo)}
    v_lshlrev_b32 {v(vG)}, 3, {v(vG)}
    v_mov_b32 {v(vFour)}, 4
    s_mov_b32 {s(sNL)}, {f32(-LOG2E)}
    s_mov_b32 {s(sKap)}, {f32(-LN2 * o.kap_adj)}
    s_mov_b32 {s(sHi)}, 0xffff0000
    """)

    def rec_loads():
        a(f"v_add_u32 {v(vLoB)}, 64, {v(vLo)}")
        for i in range(8):
            a(f"""
            v_add_u32_sdwa {v(Ad + i)}, {v(Ds + i)}, {v(vLoG)} dst_sel:DWORD src0_sel:WORD_0 src1_sel:DWORD
            v_cmp_gt_u32_sdwa {s(sMask + 4 * i, 2)}, {v(Ds + i)}, {v(vLo)} src0_sel:WORD_1 src1_sel:DWORD
            v_cmp_gt_u32_sdwa {s(sMask + 4 * i + 2, 2)}, {v(Ds + i)}, {v(vLoB)} src0_sel:WORD_1 src1_sel:DWORD
            """)
        a(f"s_mul_i32 {s(sT0)}, {s(sW)}, {4 * CHB}")
        for i in range(8):
            a(f"""
            s_or_b64 exec, {s(sMask + 4 * i, 2)}, 1
            buffer_load_dword {v(Rc + 2 * i)}, {v(Ad + i)}, {s(sREC, 4)}, {s(sT0)} offen
            s_or_b64 exec, {s(sMask + 4 * i + 2, 2)}, 1
            buffer_load_dword {v(Rc + 2 * i + 1)}, {v(Ad + i)}, {s(sREC, 4)}, {s(sT0)} offen offset:64
            """)
            if i < 7:
                a(f"s_add_u32 {s(sT0)}, {s(sT0)}, {32 * CHB}")
        a("s_mov_b64 exec, -1")

    def rec_insert(tag):
        a(f"s_mov_b32 {s(sT1)}, {CNT}")
        for k in range(16):
            a(f"s_mov_b64 exec, {s(sMask + 2 * k, 2)}")
            if k & 1:
                a(f"s_cbranch_execz L2_ia{tag}{k}")
            a(f"""
            v_and_or_b32 {v(Rk + k)}, {v(Rc + k)}, 56, {s(sT1)}
            ds_add_rtn_u32 {v(Rk + k)}, {v(Rk + k)}, {v(vFour)}
            """)
            if k & 1:
                a(f"L2_ia{tag}{k}:")
        a(f"""
        s_mov_b64 exec, -1
        s_mul_i32 {s(sT0)}, {s(sW)}, {4 * CH * 32}
        v_add_u32 {v(t0)}, {s(sT0)}, {v(vG)}
        s_waitcnt lgkmcnt(0)
        """)
        for k in range(16):
            a(f"s_mov_b64 exec, {s(sMask + 2 * k, 2)}")
            if k & 1:
                a(f"s_cbranch_execz L2_ib{tag}{k}")
            a(f"""
            v_lshrrev_b32 {v(t1)}, 20, {v(Rc + k)}
            v_min_u32 {v(Rk + k)}, {LST1 - 4}, {v(Rk + k)}
            v_lshlrev_b32 {v(Rc + k)}, 1, {v(Rc + k)}
            v_lshl_add_u32 {v(t1)}, {v(t1)}, 5, {v(t0)}
            ds_write2st64_b32 {v(Rk + k)}, {v(Rc + k)}, {v(t1)} offset1:64
            """)
            if k & 1:
                a(f"L2_ib{tag}{k}:")
                if k < 15:
                    a(f"s_mov_b64 exec, -1\nv_add_u32 {v(t0)}, {32 * CH * 32}, {v(t0)}")
        a(f"""
        s_mov_b64 exec, -1
        v_add_u32 {v(vLo)}, 128, {v(vLo)}
        v_add_u32 {v(vLoG)}, 128, {v(vLoG)}
        v_cmp_gt_u32_sdwa vcc, {v(vMx)}, {v(vLo)} src0_sel:WORD_1 src1_sel:DWORD
        """)

    npos = min(o.pos_early, 9)
    if o.pos_early <= 9:
        a(f"s_waitcnt vmcnt({n_early + npos})")
    else:
        a(f"s_waitcnt vmcnt({n_early + 9})")
    st()
    rec_loads()
    pos_dma(o.pos_early, 10)
    a(f"""
    v_max3_u32 {v(vMx)}, {v(Ds)}, {v(Ds + 1)}, {v(Ds + 2)}
    v_max3_u32 {v(vMx)}, {v(vMx)}, {v(Ds + 3)}, {v(Ds + 4)}
    v_max3_u32 {v(vMx)}, {v(vMx)}, {v(Ds + 5)}, {v(Ds + 6)}
    v_max_u32 {v(vMx)}, {v(vMx)}, {v(Ds + 7)}
    s_waitcnt vmcnt({16 + 9})
    ds_write_b32 {v(Pd + 1)}, {v(Pd + 2)} offset:128
    """)
    for r in range(4, 12):
        a(f"""
        v_lshlrev_b32 {v(t1)}, 16, {v(Wp + r)}
        v_and_b32 {v(t3)}, {s(sHi)}, {v(Wp + r)}
        v_mul_f32 {v(t1)}, {s(sNL)}, {v(t1)}
        v_mul_f32 {v(t3)}, {s(sNL)}, {v(t3)}
        v_cvt_pk_bf16_f32 {v(Wp + r)}, {v(t1)}, {v(t3)}
        """)
    a(f"""
    v_add_u32 {v(t2)}, {STG}, {v(t2)}
    ds_write_b128 {v(t2)}, {v(Wp, 4)}
    ds_write_b128 {v(t2)}, {v(Wp + 4, 4)} offset:8192
    ds_write_b128 {v(t2)}, {v(Wp + 8, 4)} offset:16384
    s_waitcnt lgkmcnt(0)
    s_barrier
    """)

    def wfrag(dst, row0, nb):
        for q in range(2):
            a(f"ds_read_b64_tr_b16 {v(dst + 2 * q, 2)}, {v(R4)} offset:{(row0 + 4 * q) * 128 + nb * 64}")

    for ks in range(4):
        for nb in range(2):
            wfrag(T + (ks * 2 + nb) * 4, 16 * ks, nb)
    for ks in range(4):
        for nb in range(2):
            wfrag(W2 + (ks * 2 + nb) * 4, 64 + 16 * ks, nb)
    for nb in range(2):
        wfrag(W4 + nb * 4, 129, nb)
    late = 9 - npos
    a(f"s_waitcnt vmcnt({late})")
    st()
    rec_insert("a")
    a("s_cbranch_vccz L2_insdone\nL2_more:")
    rec_loads()
    a("s_waitcnt vmcnt(0)")
    rec_insert("b")
    a("s_cbranch_vccnz L2_more\nL2_insdone:")
    for ks in range(4):
        for nb in range(2):
            c = "0" if ks == 0 else v(Y + 16 * nb, 16)
            a(f"v_mfma_f32_32x32x16_bf16 {v(Y + 16 * nb, 16)}, {v(Hf + 4 * ks, 4)}, {v(T + (ks * 2 + nb) * 4, 4)}, {c}")
    for i in range(32):
        a(f"v_mov_b32 {v(AC + i)}, 0")
    a(f"v_cmp_lt_u32 vcc, 31, {v(vL)}")
    for nb in range(2):
        y = Y + 16 * nb
        for r in range(7):
            a(f"v_mul_f32 {v(y + r)}, {s(sNL)}, {v(y + r)}")
        a(f"v_mul_f32 {v(y + 7)}, {s(sNL)}, {v(Wd + nb)}")
        for i in range(4):
            a(f"""
            v_cvt_pk_bf16_f32 {v(t0)}, {v(y + 2 * i)}, {v(y + 2 * i + 1)}
            v_lshlrev_b32 {v(t1)}, 16, {v(t0)}
            v_and_b32 {v(t3)}, {s(sHi)}, {v(t0)}
            v_sub_f32 {v(t1)}, {v(y + 2 * i)}, {v(t1)}
            v_sub_f32 {v(t3)}, {v(y + 2 * i + 1)}, {v(t3)}
            v_cvt_pk_bf16_f32 {v(t1)}, {v(t1)}, {v(t3)}
            v_cndmask_b32 {v(OH + 4 * nb + i)}, {v(t0)}, {v(t1)}, vcc
            """)
    if o.smfmac:
        a(f"v_mov_b32 {v(vIdx)}, 0xdddddddd")
    a(f"""
    s_mov_b32 {s(sMode)}, 0
    L2_after_insert:
    s_waitcnt vmcnt(0) lgkmcnt(0)
    s_barrier
    """)
    a(f"""
    v_and_b32 {v(t1)}, 7, {v(vL)}
    v_lshlrev_b32 {v(t0)}, 3, {v(t1)}
    v_add_u32 {v(t0)}, {CNT}, {v(t0)}
    ds_read_b32 {v(t0)}, {v(t0)}
    v_lshlrev_b32 {v(t1)}, 11, {v(t1)}
    v_add_u32 {v(t1)}, {LST0 + 2048}, {v(t1)}
    s_lshl_b32 {s(sT1)}, {s(sW)}, 11
    s_add_u32 {s(sT1)}, {s(sT1)}, {LST0}
    v_lshrrev_b32 {v(vLa4)}, 3, {v(vL)}
    v_lshl_add_u32 {v(vLa4)}, {v(vLa4)}, 4, {s(sT1)}
    v_and_b32 {v(t3)}, 31, {v(vL)}
    v_lshl_add_u32 {v(vLa1)}, {v(t3)}, 2, {s(sT1)}
    s_waitcnt lgkmcnt(0)
    v_cmp_gt_u32 vcc, {v(t0)}, {v(t1)}
    v_readlane_b32 {s(sT0)}, {v(t0)}, {s(sW)}
    s_cbranch_vccnz L2_overflow
    s_sub_u32 {s(sNT)}, {s(sT0)}, {s(sT1)}
    s_add_u32 {s(sNT)}, {s(sNT)}, 127
    s_lshr_b32 {s(sNT)}, {s(sNT)}, 7
    s_lshl_b32 {s(sIt)}, {s(sNT)}, 7
    s_add_u32 {s(sIt)}, {s(sIt)}, {s(sT1)}
    v_lshl_add_u32 {v(t3)}, {v(t3)}, 2, {s(sT0)}
    v_mov_b32 {v(t0)}, {NULL0:#x}
    v_bfrev_b32 {v(t1)}, 1
    v_cmp_gt_u32 vcc, {s(sIt)}, {v(t3)}
    s_mov_b64 exec, vcc
    ds_write2st64_b32 {v(t3)}, {v(t0)}, {v(t1)} offset1:64
    s_mov_b64 exec, -1
    s_cmp_eq_u32 {s(sNT)}, 0
    s_cbranch_scc1 L2_notiles
    """)
    st()

    def entries():
        a(f"""
        ds_read_b128 {v(R4, 4)}, {v(vLa4)}
        ds_read2st64_b32 {v(R1, 2)}, {v(vLa1)} offset1:64
        v_add_u32 {v(vLa4)}, 128, {v(vLa4)}
        v_add_u32 {v(vLa1)}, 128, {v(vLa1)}
        """)

    def addr_calc():
        for j in range(4):
            a(f"v_and_or_b32 {v(R4 + j)}, {v(R4 + j)}, {s(sHM)}, {v(Cj + j)}")
        a(f"""
        v_add_u32 {v(R2)}, {v(R2)}, {v(vHh16)}
        v_and_b32 {v(t0)}, 14, {v(R1)}
        v_bfe_u32 {v(t1)}, {v(R1)}, 7, 14
        s_mov_b32 exec_hi, 0
        ds_write_b64 {v(vSold)}, {v(Zero, 2)}
        s_mov_b32 exec_hi, -1
        v_lshl_add_u32 {v(t2)}, {v(t0)}, 3, {v(vTb)}
        v_mul_u32_u24 {v(t1)}, 6, {v(t1)}
        v_lshl_add_u32 {v(vSold)}, {v(t0)}, 2, {v(vSbe)}
        """)

    def issue():
        a(f"s_mov_b32 m0, {s(sStg)}")
        a(f"buffer_load_dwordx4 {v(Ef, 4)}, {v(R2)}, {s(sEA, 4)}, 0 offen {o.ea_ld}")
        for j in range(4):
            a(f"buffer_load_dwordx4 {v(R4 + j)}, {s(sH, 4)}, 0 offen lds")
            if j < 3:
                a("s_add_u32 m0, m0, 1024\ns_nop 0")

    def geom_reads():
        for c in range(3):
            a(f"ds_read_u16_d16_hi {v(Ps + c)}, {v(t1)} offset:{POS + 2 * c}")
        a(f"ds_read_b96 {v(Pd, 3)}, {v(t2)} offset:128")
        a(f"ds_read_b128 {v(Oa, 4)}, {v(t2)}")

    def geom_calc(fill=None):
        fill = fill or (lambda n: a(f"s_nop {n - 1}"))
        for c in range(3):
            a(f"v_sub_f32 {v(Pd + c)}, {v(Pd + c)}, {v(Ps + c)}")
        a(f"""
        v_cvt_pk_bf16_f32 {v(Val + 1)}, {v(Pd + 1)}, {v(Pd + 2)}
        v_cvt_pk_bf16_f32 {v(Val)}, 1.0, {v(Pd)}
        v_and_b32 {v(Pd)}, {s(sHi)}, {v(Val)}
        v_mul_f32 {v(Pd)}, {v(Pd)}, {v(Pd)}
        v_dot2_f32_bf16 {v(Pd)}, {v(Val + 1)}, {v(Val + 1)}, {v(Pd)}
        s_mov_b32 exec_hi, 0
        ds_write_b64 {v(vSold)}, {v(Val, 2)}
        s_mov_b32 exec_hi, -1
        v_cvt_pk_bf16_f32 {v(Oa + 3)}, {v(Oa + 3)}, {v(Pd)}
        """)

    def final_prefetch():
        a(f"""
        s_and_b32 {s(sT0)}, {s(sW)}, 3
        s_lshl_b32 {s(sT0)}, {s(sT0)}, 5
        v_and_b32 {v(R4)}, 1, {v(vL)}
        v_lshlrev_b32 {v(R4)}, 4, {v(R4)}
        v_lshrrev_b32 {v(R4 + 1)}, 1, {v(vL)}
        v_lshl_add_u32 {v(R4 + 1)}, {v(R4 + 1)}, 7, {v(R4)}
        v_lshrrev_b32 {v(R4 + 2)}, 2, {v(vL)}
        v_bfe_u32 {v(R4 + 3)}, {v(vL)}, 1, 1
        v_lshl_add_u32 {v(R4 + 2)}, {v(R4 + 3)}, 5, {v(R4 + 2)}
        v_lshl_add_u32 {v(R4 + 2)}, {v(R4 + 2)}, 7, {v(R4)}
        s_mov_b32 m0, {s(sStg)}
        s_add_u32 {s(sT1)}, {s(sT0)}, 4096
        buffer_load_dwordx4 {v(R4 + 1)}, {s(sWH, 4)}, {s(sT0)} offen lds
        s_add_u32 m0, m0, 1024
        s_nop 0
        buffer_load_dwordx4 {v(R4 + 1)}, {s(sWH, 4)}, {s(sT1)} offen lds
        s_add_u32 m0, m0, 1024
        s_add_u32 {s(sT1)}, {s(sT0)}, 8192
        buffer_load_dwordx4 {v(R4 + 2)}, {s(sWH, 4)}, {s(sT1)} offen lds
        s_add_u32 m0, m0, 1024
        s_add_u32 {s(sT1)}, {s(sT0)}, {8192 + 2048}
        buffer_load_dwordx4 {v(R4 + 2)}, {s(sWH, 4)}, {s(sT1)} offen lds
        s_lshr_b32 {s(sT1)}, {s(sW)}, 2
        s_lshl_b32 {s(sT1)}, {s(sT1)}, 5
        s_add_u32 {s(sT1)}, {s(sT1)}, {s(sN0)}
        s_lshl_b32 {s(sT1)}, {s(sT1)}, 7
        v_and_b32 {v(R4)}, 15, {v(vL)}
        v_lshlrev_b32 {v(R4)}, 7, {v(R4)}
        v_lshrrev_b32 {v(R4 + 3)}, 4, {v(vL)}
        v_lshl_add_u32 {v(R4 + 1)}, {v(R4 + 3)}, 4, {v(R4)}
        v_lshl_add_u32 {v(R4 + 2)}, {v(R4 + 3)}, 3, {v(R4)}
        v_add_u32 {v(R4 + 2)}, {s(sT0)}, {v(R4 + 2)}
        """)
        for nk in range(2):
            for sp in range(2):
                a(f"buffer_load_dwordx4 {v(HB + 8 * nk + 4 * sp, 4)}, {v(R4 + 1)}, {s(sH, 4)}, {s(sT1)} offen offset:{2048 * nk + 64 * sp}")
            a(f"buffer_load_dwordx2 {v(HR + 2 * nk, 2)}, {v(R4 + 2)}, {s(sH, 4)}, {s(sT1)} offen offset:{2048 * nk}")

    entries()
    a("s_waitcnt lgkmcnt(0)")
    addr_calc()
    issue()
    geom_reads()
    entries()
    a("s_waitcnt lgkmcnt(2)")
    geom_calc()
    a(f"s_mov_b32 {s(sIt)}, 1\ns_waitcnt lgkmcnt(0)")

    def mf(d, A, B, first=False):
        a(f"v_mfma_f32_32x32x16_bf16 {v(d, 16)}, {v(A, 4)}, {v(B, 4)}, {'0' if first else v(d, 16)}")

    P = Hf
    a("L2_loop:\ns_waitcnt vmcnt(0)")
    for ks in range(4):
        a(f"ds_read_b128 {v(Hf + 4 * ks, 4)}, {v(Hrd + ks)}")
    for ks in range(2):
        for q in range(2):
            a(f"ds_read_b64_tr_b16 {v(Sa + 4 * ks + 2 * q, 2)}, {v(vSrd)} offset:{(16 * ks + qs * q) * 64}")
    mf(Y, Oa, OH, True)
    mf(Y + 16, Oa, OH + 4, True)
    mf(Y, Ef, W4)
    mf(Y + 16, Ef, W4 + 4)
    addr_calc()
    a(f"""
    s_cmp_ge_u32 {s(sIt)}, {s(sNT)}
    s_waitcnt lgkmcnt(5)
    s_cbranch_scc1 L2_last
    """)
    issue()
    a("L2_cont:")
    for ks in range(4):
        mf(Y, Hf + 4 * ks, W2 + 8 * ks)
    geom_reads()
    mf(Y + 16, Hf, W2 + 4)
    entries()
    a("s_nop 1")

    def exps(nb, lo, hi):
        for i in range(lo, hi):
            a(f"v_exp_f32 {v(T + 16 * nb + i)}, {v(Y + 16 * nb + i)}")

    def add1(nb):
        if o.mfma_add:
            a(f"v_mfma_f32_16x16x4_4b_bf16 {v(T + 16 * nb, 16)}, {v(One, 2)}, {v(One, 2)}, {v(T + 16 * nb, 16)}")
        else:
            for i in range(16):
                a(f"v_add_f32 {v(T + 16 * nb + i)}, 1.0, {v(T + 16 * nb + i)}")

    def rcps(nb):
        for i in range(16):
            a(f"v_rcp_f32 {v(T + 16 * nb + i)}, {v(T + 16 * nb + i)}")

    def muls(nb):
        for i in range(16):
            a(f"v_mul_f32 {v(Y + 16 * nb + i)}, {v(Y + 16 * nb + i)}, {v(T + 16 * nb + i)}")

    def seg(nb):
        if o.smfmac:
            a("s_nop 1")
            for ks in range(2):
                a(f"v_smfmac_f32_32x32x32_bf16 {v(AC + 16 * nb, 16)}, {v(Sa + 4 * ks, 4)}, {v(Y + 16 * nb + 8 * ks, 8)}, {v(vIdx)}")
        else:
            for i in range(8):
                a(f"v_cvt_pk_bf16_f32 {v(P + 8 * nb + i)}, {v(Y + 16 * nb + 2 * i)}, {v(Y + 16 * nb + 2 * i + 1)}")
            mf(AC + 16 * nb, Sa, P + 8 * nb)
            a("s_nop 0")
            mf(AC + 16 * nb, Sa + 4, P + 8 * nb + 4)

    for ks in range(1, 4):
        exps(0, 4 * (ks - 1), 4 * ks)
        mf(Y + 16, Hf + 4 * ks, W2 + 8 * ks + 4)
    exps(0, 12, 16)
    a("s_waitcnt lgkmcnt(2)")
    if o.mfma_add:
        a("s_nop 0")
        add1(0)
        geom_calc()
        exps(1, 0, 16)
        a("s_nop 1")
        add1(1)
        rcps(0)
        muls(0)
        seg(0)
        rcps(1)
        muls(1)
        seg(1)
    else:
        geom_calc()
        add1(0)
        rcps(0)
        muls(0)
        seg(0)
        exps(1, 0, 16)
        add1(1)
        rcps(1)
        muls(1)
        seg(1)
    a(f"""
    s_add_u32 {s(sIt)}, {s(sIt)}, 1
    s_cmp_le_u32 {s(sIt)}, {s(sNT)}
    s_waitcnt lgkmcnt(0)
    s_cbranch_scc1 L2_loop
    s_branch L2_tiles_done
    L2_last:
    """)
    final_prefetch()
    a("s_branch L2_cont\nL2_notiles:")
    final_prefetch()
    a(f"""
    L2_tiles_done:
    s_cmp_eq_u32 {s(sMode)}, 0
    s_cbranch_scc1 L2_epi
    s_branch L2_safe_next
    L2_overflow:
    s_mov_b32 {s(sMode)}, 1
    s_mov_b32 {s(sCi)}, 0
    s_mov_b32 {s(sSo)}, 0
    L2_safe_next:
    s_lshl_b32 {s(sT0)}, {s(sBk)}, 8
    s_add_u32 {s(sT0)}, {s(sT0)}, {s(sCi)}
    s_lshl_b32 {s(sT0)}, {s(sT0)}, 2
    s_buffer_load_dword {s(sNT)}, {s(sDESC, 4)}, {s(sT0)}
    s_waitcnt lgkmcnt(0)
    s_lshr_b32 {s(sIt)}, {s(sNT)}, 16
    s_cmp_lt_u32 {s(sSo)}, {s(sIt)}
    s_cbranch_scc1 L2_safe_go
    s_mov_b32 {s(sSo)}, 0
    s_add_u32 {s(sCi)}, {s(sCi)}, 1
    s_cmp_lt_u32 {s(sCi)}, 256
    s_cbranch_scc1 L2_safe_next
    s_branch L2_epi
    L2_safe_go:
    s_waitcnt vmcnt(0) lgkmcnt(0)
    s_barrier
    """)
    reset_counters()
    a(f"""
    s_and_b32 {s(sT0)}, {s(sCi)}, 7
    s_lshl_b32 {s(sT0)}, {s(sT0)}, 5
    s_lshr_b32 {s(sT1)}, {s(sCi)}, 3
    s_add_u32 {s(sT0)}, {s(sT0)}, {s(sT1)}
    s_mul_i32 {s(sT0)}, {s(sT0)}, {CHB}
    s_and_b32 {s(sNT)}, {s(sNT)}, 0xffff
    s_add_u32 {s(sNT)}, {s(sNT)}, {s(sT0)}
    s_lshl_b32 {s(sT0)}, {s(sT0)}, 3
    v_lshl_add_u32 {v(t2)}, v0, 2, {s(sSo)}
    s_add_u32 {s(sSo)}, {s(sSo)}, 2048
    buffer_load_dword {v(t0)}, {v(t2)}, {s(sREC, 4)}, {s(sNT)} offen
    v_cmp_gt_u32 vcc, {s(sIt)}, {v(t2)}
    s_mov_b32 {s(sT1)}, {CNT}
    v_mov_b32 {v(t3)}, 4
    s_waitcnt vmcnt(0) lgkmcnt(0)
    s_barrier
    s_mov_b64 exec, vcc
    v_and_or_b32 {v(t2)}, {v(t0)}, 56, {s(sT1)}
    ds_add_rtn_u32 {v(t2)}, {v(t2)}, {v(t3)}
    v_lshrrev_b32 {v(t1)}, 20, {v(t0)}
    v_lshlrev_b32 {v(t0)}, 1, {v(t0)}
    v_lshl_add_u32 {v(t1)}, {v(t1)}, 5, {s(sT0)}
    s_waitcnt lgkmcnt(0)
    ds_write2st64_b32 {v(t2)}, {v(t0)}, {v(t1)} offset1:64
    s_mov_b64 exec, -1
    s_branch L2_after_insert
    L2_epi:
    """)
    st()
    a(f"""
    s_lshl_b32 {s(sT0)}, {s(sW)}, 11
    s_add_u32 {s(sT0)}, {s(sT0)}, {SBUF}
    v_lshl_add_u32 {v(t2)}, {v(vL)}, 2, {s(sT0)}
    v_add_u32 {v(t3)}, {s(sT0)}, {v(vHh16)}
    v_mul_f32 {v(vWx)}, {s(sKap)}, {v(vWx)}
    v_mul_f32 {v(vWx + 1)}, {s(sKap)}, {v(vWx + 1)}
    s_nop 5
    """)
    for j in range(4):
        a(f"""
        v_mul_f32 {v(t0)}, {s(sKap)}, {v(AC + 4 * j)}
        v_mul_f32 {v(t1)}, {s(sKap)}, {v(AC + 16 + 4 * j)}
        v_cvt_pk_bf16_f32 {v(t0)}, {v(t0)}, {v(t1)}
        ds_write_b32 {v(t2)}, {v(t0)} offset:{256 * j}
        """)
    pr = [AC + 4 * j + c for j in range(4) for c in (1, 2, 3)]
    for r in pr:
        a(f"v_mul_f32 {v(r)}, {v(vWx)}, {v(r)}")
    for r in pr:
        a(f"v_fmac_f32 {v(r)}, {v(vWx + 1)}, {v(r + 16)}")
    for sh in (1, 2, 4, 8):
        for r in pr:
            a(f"v_add_f32_dpp {v(r)}, {v(r)}, {v(r)} row_shr:{sh} row_mask:0xf bank_mask:0xf bound_ctrl:1")
    for r in pr:
        a(f"v_add_f32_dpp {v(r)}, {v(r)}, {v(r)} row_bcast:15 row_mask:0xa bank_mask:0xf")
    a("s_mov_b32 exec_lo, 0x80000000\ns_mov_b32 exec_hi, 0x80000000")
    for j in range(4):
        a(f"ds_write_b128 {v(t3)}, {v(AC + 4 * j, 4)} offset:{1024 + 32 * j}")
    a("s_mov_b64 exec, -1")

    def rows(n, ra, rb, x0, x1, shift, base):
        a(f"""
        v_mul_u32_u24 {v(x0)}, 43, {v(n)}
        v_lshrrev_b32 {v(x0)}, 8, {v(x0)}
        v_min_u32 {v(x0)}, 7, {v(x0)}
        v_mul_u32_u24 {v(x1)}, 6, {v(x0)}
        v_sub_u32 {v(x1)}, {v(n)}, {v(x1)}
        v_min_u32 {v(x1)}, 7, {v(x1)}
        v_cmp_eq_u32 vcc, 0, {v(x1)}
        v_cmp_lt_u32 {s(sMask + 8, 2)}, 0, {v(x0)}
        v_lshl_add_u32 {v(x0)}, {v(x0)}, 11, {v(base)}
        v_lshl_add_u32 {v(ra)}, {v(x1)}, {shift}, {v(x0)}
        s_and_b64 vcc, vcc, {s(sMask + 8, 2)}
        v_add_u32 {v(rb)}, {7 << shift}, {v(x0)}
        v_subrev_u32 {v(x0)}, {2048 - (6 << shift)}, {v(x0)}
        v_cndmask_b32 {v(rb)}, {v(rb)}, {v(x0)}, vcc
        """)

    WA = W2
    RA = W2 + 16
    vN = W2 + 20
    vPA, vPB, vPn, vPo = W2 + 24, W2 + 25, W2 + 26, W2 + 27
    Z = Y
    a(f"""
    v_lshrrev_b32 {v(t0)}, 4, {v(vL)}
    v_bfe_u32 {v(t1)}, {v(vL)}, 2, 2
    v_lshl_add_u32 {v(t1)}, {v(t0)}, 3, {v(t1)}
    v_lshl_add_u32 {v(t1)}, {v(t1)}, 5, {s(sStg)}
    v_and_b32 {v(t2)}, 3, {v(vL)}
    v_lshl_add_u32 {v(t1)}, {v(t2)}, 3, {v(t1)}
    s_waitcnt vmcnt(0)
    """)
    for sp in range(4):
        for q in range(2):
            a(f"ds_read_b64_tr_b16 {v(WA + 4 * sp + 2 * q, 2)}, {v(t1)} offset:{(32 * sp + 4 * q) * 32}")
    a(f"""
    s_lshr_b32 {s(sT1)}, {s(sW)}, 2
    s_lshl_b32 {s(sT1)}, {s(sT1)}, 5
    v_and_b32 {v(vN)}, 15, {v(vL)}
    v_add_u32 {v(vN)}, {s(sT1)}, {v(vN)}
    v_add_u32 {v(vN + 1)}, 16, {v(vN)}
    v_lshlrev_b32 {v(t0)}, 4, {v(t0)}
    v_add_u32 {v(t0)}, {SBUF}, {v(t0)}
    """)
    for nk in range(2):
        rows(vN + nk, RA + 2 * nk, RA + 2 * nk + 1, t2, t3, 7, t0)
    a(f"""
    v_mul_u32_u24 {v(vPn)}, 171, v0
    v_lshrrev_b32 {v(vPn)}, 9, {v(vPn)}
    v_mul_u32_u24 {v(t0)}, 3, {v(vPn)}
    v_sub_u32 {v(t0)}, v0, {v(t0)}
    v_lshlrev_b32 {v(t0)}, 2, {v(t0)}
    v_add_u32 {v(t0)}, {SBUF + 1024 + 4}, {v(t0)}
    v_min_u32 {v(vPn)}, 63, {v(vPn)}
    """)
    rows(vPn, vPA, vPB, t2, t3, 4, t0)
    a(f"""
    s_mul_i32 {s(sT0)}, {s(sN0)}, 6
    v_lshl_add_u32 {v(vPo)}, v0, 1, {s(sT0)}
    ds_read_u16_d16_hi {v(Ps)}, {v(vPo)} offset:{POS}
    s_waitcnt lgkmcnt(0)
    """)

    def mf16(d, A, B, first=False):
        a(f"v_mfma_f32_16x16x32_bf16 {v(d, 4)}, {v(A, 4)}, {v(B, 4)}, {'0' if first else v(d, 4)}")

    for sp in range(2):
        for nk in range(2):
            mf16(Z + 4 * nk, WA + 4 * sp, HB + 8 * nk + 4 * sp, sp == 0)
    a("s_barrier")
    st()
    for nk in range(2):
        for ab in range(2):
            for sp in range(2):
                a(f"ds_read_b128 {v(T + 16 * nk + 8 * ab + 4 * sp, 4)}, {v(RA + 2 * nk + ab)} offset:{64 * sp}")
    a(f"ds_read_b32 {v(vPA)}, {v(vPA)}\nds_read_b32 {v(vPB)}, {v(vPB)}")
    a(f"""
    s_and_b32 {s(sT0)}, {s(sW)}, 3
    s_lshl_b32 {s(sT0)}, {s(sT0)}, 5
    s_lshl_b32 {s(sT1)}, {s(sN0)}, 7
    s_add_u32 {s(sT1)}, {s(sT1)}, {s(sT0)}
    v_lshrrev_b32 {v(t0)}, 4, {v(vL)}
    v_lshl_add_u32 {v(t0)}, {v(t0)}, 3, {s(sT1)}
    v_bfrev_b32 {v(t1)}, 1
    """)
    for nk in range(2):
        a(f"""
        v_cmp_gt_u32 vcc, {NB}, {v(vN + nk)}
        v_lshl_add_u32 {v(vN + nk)}, {v(vN + nk)}, 7, {v(t0)}
        s_nop 0
        v_cndmask_b32 {v(vN + nk)}, {v(t1)}, {v(vN + nk)}, vcc
        """)
    a(f"""
    v_cmp_gt_u32 vcc, {NB * 3}, v0
    s_waitcnt lgkmcnt(2)
    """)
    for ab in range(2):
        for sp in range(2):
            for nk in range(2):
                mf16(Z + 4 * nk, WA + 8 + 4 * sp, T + 16 * nk + 8 * ab + 4 * sp)
    a(f"""
    v_cndmask_b32 {v(vPo)}, {v(t1)}, {v(vPo)}, vcc
    s_waitcnt lgkmcnt(0)
    v_add_f32 {v(vPA)}, {v(vPA)}, {v(vPB)}
    v_cvt_pk_bf16_f32 {v(vPA)}, 0, {v(vPA)}
    v_add_f32 {v(vPA)}, {v(vPA)}, {v(Ps)}
    v_cvt_pk_bf16_f32 {v(vPA)}, {v(vPA)}, {v(vPA)}
    buffer_store_short {v(vPA)}, {v(vPo)}, {s(sOP, 4)}, 0 offen
    s_nop 1
    """)
    U = T
    for i in range(8):
        a(f"v_cvt_pk_bf16_f32 {v(Z + i)}, 0, {v(Z + i)}")
    for i in range(8):
        a(f"v_mul_f32 {v(U + i)}, {s(sNL)}, {v(Z + i)}")
    for i in range(8):
        a(f"v_exp_f32 {v(U + i)}, {v(U + i)}")
    for i in range(8):
        a(f"v_add_f32 {v(U + i)}, 1.0, {v(U + i)}")
    for i in range(8):
        a(f"v_rcp_f32 {v(U + i)}, {v(U + i)}")
    for i in range(8):
        a(f"v_mul_f32 {v(Z + i)}, {v(Z + i)}, {v(U + i)}")
    for i in range(8):
        a(f"v_cvt_pk_bf16_f32 {v(Z + i)}, 0, {v(Z + i)}")
    for i in range(4):
        a(f"""
        v_lshlrev_b32 {v(U + 2 * i)}, 16, {v(HR + i)}
        v_and_b32 {v(U + 2 * i + 1)}, {s(sHi)}, {v(HR + i)}
        v_add_f32 {v(U + 2 * i)}, {v(U + 2 * i)}, {v(Z + 2 * i)}
        v_add_f32 {v(U + 2 * i + 1)}, {v(U + 2 * i + 1)}, {v(Z + 2 * i + 1)}
        v_cvt_pk_bf16_f32 {v(HR + i)}, {v(U + 2 * i)}, {v(U + 2 * i + 1)}
        """)
        if i & 1:
            a(f"buffer_store_dwordx2 {v(HR + i - 1, 2)}, {v(vN + i // 2)}, {s(sOH, 4)}, 0 offen")
    if o.stamps:
        a("s_waitcnt vmcnt(0)")
        st()
        st.dump(sMask + 12, sWS, 1, sW, t0)
    a("L2_end:\ns_endpgm")
    a(descriptor(name, 256, 102))
    return name


HEADER = open("cdna_kernels/%s.s.ref" % NAME).read().split("; Override launch")[0]


def build(o):
    a = Asm()
    k1 = gen_k1(a, o)
    k2 = gen_k2(a, o)
    head = HEADER
    head += f"; @launch kernel={k1} grid=(256,1,1) block=({K1_THREADS},1,1) lds={K1_LDS}\n"
    head += f"; @launch kernel={k2} grid=(256,1,1) block=(512,1,1) lds={K2_LDS}\n"
    head += '.amdgcn_target "amdgcn-amd-amdhsa--gfx950"\n.text\n'
    return head + a.text()


def options(argv):
    p = argparse.ArgumentParser()
    p.add_argument("-o", default=f"cdna_kernels/{NAME}.s")
    p.add_argument("--stamps", type=int, default=0)
    p.add_argument("--smfmac", type=int, default=0)
    p.add_argument("--mfma_add", type=int, default=0)
    p.add_argument("--kap_adj", type=float, default=1.0)
    p.add_argument("--pos_early", type=int, default=4)
    p.add_argument("--k1_ld", default="")
    p.add_argument("--k1_st", default="")
    p.add_argument("--ea_ld", default="")
    return p.parse_args(argv)


if __name__ == "__main__":
    o = options(sys.argv[1:])
    txt = build(o)
    bad = hazard.check(txt)
    for p_, c_, n_, d_ in bad:
        print(f"HAZARD need {n_} have {d_}: L{p_.ln} '{p_.text}' -> L{c_.ln} '{c_.text}'")
    open(o.o, "w").write(txt)
    print("wrote", o.o, len(txt.splitlines()), "lines;", len(bad), "hazards")
```
